```python
import torch

def _softmax(x, axis=-1):
    return torch.softmax(x, dim=axis)
def _gelu(x):
    return torch.nn.functional.gelu(x, approximate="tanh")
def _silu(x):
    return torch.nn.functional.silu(x)
def _sigmoid(x):
    return torch.sigmoid(x)
def _layernorm(x, axis=-1, eps=1e-5):
    m = x.mean(dim=axis, keepdim=True)
    v = x.var(dim=axis, keepdim=True, unbiased=False)
    return (x - m) / torch.sqrt(v + eps)
def _scatter_add(tgt, idx, src, axis=0):
    return tgt.clone().index_add_(axis, idx, src)
def _segment_sum(src, seg, n):
    out = torch.zeros((n,) + src.shape[1:], dtype=src.dtype)
    return out.index_add_(0, seg, src)
def _pad(x, pw):
    flat = tuple(v for pair in reversed(pw) for v in pair)
    return torch.nn.functional.pad(x, flat)

kernel_name = 'parallel_sum__linear_kernel_hedgehog__dense_activation_silu__prompt'

def setup_inputs():

    _w = (lambda a: (lambda t: t.to(torch.bfloat16) if t.is_floating_point() else t)(torch.as_tensor(a)))
    def _A_setup():
        B, S, D, H = 1, 2048, 512, 32
        Dh = D // H
        return {
            "x": _w((lambda *s: torch.randn(*s, dtype=torch.bfloat16) * 0.05)(B, S, D)),
            "wqkv": _w((lambda *s: torch.randn(*s, dtype=torch.bfloat16) * 0.2)(D, 3 * D)),
            "w_phi": _w((lambda *s: torch.randn(*s, dtype=torch.bfloat16) * 0.2)(H, Dh, Dh) * (Dh ** -0.5)),
            "wo": _w((lambda *s: torch.randn(*s, dtype=torch.bfloat16) * 0.05)(D, D)),
        }
    _A_in = _A_setup()

    def _B_setup():
        B, S, D, F = 1, 2048, 512, 1792
        return {
            "x": _w((lambda *s: torch.randn(*s, dtype=torch.bfloat16) * 0.05)(B, S, D)),
            "w1": _w((lambda *s: torch.randn(*s, dtype=torch.bfloat16) * 0.8)(D, F) * (D ** -0.5)),
            "w2": _w((lambda *s: torch.randn(*s, dtype=torch.bfloat16) * 0.1)(F, D) * (F ** -0.5)),
        }
    _B_in = _B_setup()

    return {
        "A_x": _A_in["x"],
        "A_wqkv": _A_in["wqkv"],
        "A_w_phi": _A_in["w_phi"],
        "A_wo": _A_in["wo"],
        "B_x": _B_in["x"],
        "B_w1": _B_in["w1"],
        "B_w2": _B_in["w2"],
    }

def reference(A_x, A_wqkv, A_w_phi, A_wo, B_x, B_w1, B_w2):
    def _A_ref(x, wqkv, w_phi, wo):
        B, S, D = x.shape
        H = 32; Dh = D // H
        qkv = (lambda x, *d: x.permute(*d))((x @ wqkv).reshape(B, S, 3, H, Dh), 2, 0, 3, 1, 4)
        q, k, v = qkv[0], qkv[1], qkv[2]
        pq = torch.einsum("bhsd,hdf->bhsf", q, w_phi)
        pk = torch.einsum("bhsd,hdf->bhsf", k, w_phi)
        phi_q = torch.concatenate([_softmax(pq, axis=-1), _softmax(-pq, axis=-1)], axis=-1)
        phi_k = torch.concatenate([_softmax(pk, axis=-1), _softmax(-pk, axis=-1)], axis=-1)
        kv = torch.einsum("bhsf,bhsd->bhfd", phi_k, v)
        z  = torch.einsum("bhsf->bhf", phi_k)
        num = torch.einsum("bhqf,bhfd->bhqd", phi_q, kv)
        den = torch.einsum("bhqf,bhf->bhq", phi_q, z)[..., None] + 1e-6
        o = num / den
        return (lambda x, *d: x.permute(*d))(o, 0, 2, 1, 3).reshape(B, S, D) @ wo

    def _B_ref(x, w1, w2):
        h = torch.einsum("bsd,df->bsf", x, w1)
        h = _silu(h)
        out = torch.einsum("bsf,fd->bsd", h, w2)
        return out

    x = A_x
    xn = _layernorm(x, axis=-1)
    return x + _A_ref(xn, A_wqkv, A_w_phi, A_wo) + _B_ref(xn, B_w1, B_w2)
```

```python
import re

TRANS = ("v_exp_f32", "v_log_f32", "v_rcp_f32", "v_rsq_f32", "v_sqrt_f32", "v_sin_f32", "v_cos_f32")

def regs_of(tok):
    tok = tok.strip()
    tok = tok.lstrip("-").strip("|")
    m = re.fullmatch(r"([vsa])\[(\d+):(\d+)\]", tok)
    if m:
        return {(m.group(1), i) for i in range(int(m.group(2)), int(m.group(3)) + 1)}
    m = re.fullmatch(r"([vsa])(\d+)", tok)
    if m:
        return {(m.group(1), int(m.group(2)))}
    if tok in ("vcc", "vcc_lo", "vcc_hi"):
        return {("vcc", 0)}
    if tok in ("exec", "exec_lo", "exec_hi"):
        return {("exec", 0)}
    if tok == "m0":
        return {("m0", 0)}
    return set()

class Ins:
    __slots__ = ("text", "op", "kind", "rd", "wr", "srcc", "srcab", "nop", "label", "branch", "stdata")
    def __init__(self, text):
        self.text = text
        t = text.split(";")[0].strip()
        self.label = None; self.branch = None; self.nop = 0
        self.rd = set(); self.wr = set(); self.srcc = set(); self.srcab = set(); self.stdata = set()
        if t.endswith(":"):
            self.label = t[:-1]; self.op = "label"; self.kind = "label"; return
        if t.startswith("."):
            self.op = "dir"; self.kind = "dir"; return
        parts = t.split(None, 1)
        op = parts[0]; self.op = op
        rest = parts[1] if len(parts) > 1 else ""
        ops = [o.strip() for o in re.split(r",(?![^\[]*\])", rest)] if rest else []
        mods = []
        if ops:
            sp = ops[-1].split()
            if sp:
                ops[-1] = sp[0]; mods = sp[1:]
        R = [regs_of(o) for o in ops]
        base = re.sub(r"_e(32|64)$", "", op)
        if op == "s_nop":
            self.kind = "nop"; self.nop = int(ops[0], 0) + 1; return
        if op.startswith("s_cbranch") or op == "s_branch":
            self.kind = "branch"; self.branch = ops[0]; return
        if op.startswith("v_mfma"):
            self.kind = "mfma"; self.wr = R[0]; self.srcab = R[1] | R[2]; self.srcc = R[3]
            self.rd = self.srcab | self.srcc; return
        if op.startswith("buffer_load") or op.startswith("global_load"):
            if "lds" in mods:
                self.kind = "ldsdma"; self.rd = set().union(*R) | {("m0", 0)}
            else:
                self.kind = "vload"; self.wr = R[0]; self.rd = set().union(*R[1:])
                if "d16" in op: self.rd |= R[0]
            return
        if op.startswith("buffer_store") or op.startswith("global_store"):
            self.kind = "vstore"; self.rd = set().union(*R)
            if "x4" in op or "x3" in op: self.stdata = R[0] if op.startswith("buffer") else R[1]
            return
        if op.startswith("buffer_atomic") or op.startswith("global_atomic"):
            self.kind = "vstore"; self.rd = set().union(*R)
            if "sc0" in mods: self.wr = R[0]
            return
        if op.startswith("ds_read") or op.startswith("ds_bpermute") or op.startswith("ds_permute"):
            self.kind = "dsread"; self.wr = R[0]; self.rd = set().union(*R[1:]); return
        if op.startswith("ds_write") or op.startswith("ds_add"):
            self.kind = "dswrite"; self.rd = set().union(*R)
            if "b128" in op or "b96" in op: self.stdata = R[1]
            return
        if op.startswith("s_load"):
            self.kind = "smem"; self.wr = R[0]; self.rd = set().union(*R[1:]); return
        if op.startswith("s_"):
            self.kind = "salu"
            if op in ("s_waitcnt", "s_barrier", "s_endpgm", "s_setprio", "s_sleep"):
                return
            if op.startswith("s_cmp") or op.startswith("s_bitcmp"):
                self.rd = set().union(*R) if R else set(); return
            self.wr = R[0]; self.rd = set().union(*R[1:]) if len(R) > 1 else set(); return
        if op.startswith("v_"):
            self.kind = "valu"
            if base in TRANS: self.kind = "trans"
            if base.startswith("v_dot2"): self.kind = "dot"
            if base.startswith("v_permlane"):
                self.kind = "permlane"; self.wr = R[0] | R[1]; self.rd = R[0] | R[1]; return
            if base in ("v_readfirstlane_b32", "v_readlane_b32"):
                self.kind = "readlane"; self.wr = R[0]; self.rd = set().union(*R[1:]); return
            if base.startswith("v_cmp"):
                self.wr = R[0]; self.rd = set().union(*R[1:]); return
            self.wr = R[0]; self.rd = set().union(*R[1:]) if len(R) > 1 else set()
            if base in ("v_dot2c_f32_bf16", "v_fmac_f32", "v_pk_fmac_f16"):
                self.rd |= R[0]; self.srcc = R[0]
            if base == "v_dot2_f32_bf16":
                self.srcc = R[3]
            if base == "v_cndmask_b32" and len(R) == 3:
                self.rd |= {("vcc", 0)}
            if base in ("v_add_co_u32", "v_sub_co_u32"):
                self.wr = R[0] | R[1]; self.rd = set().union(*R[2:])
            if base in ("v_addc_co_u32",):
                self.wr = R[0] | R[1]; self.rd = set().union(*R[2:])
            return
        self.kind = "other"

VALU_KINDS = ("valu", "trans", "dot", "permlane", "readlane")

def need(J, I):
    n = 0
    jv = J.kind in VALU_KINDS
    iv = I.kind in VALU_KINDS
    if jv:
        wv = {r for r in J.wr if r[0] in ("v", "a")}
        ws = {r for r in J.wr if r[0] in ("s", "vcc")}
        if wv:
            if I.kind == "mfma" and wv & I.rd: n = max(n, 2)
            if I.kind == "permlane" and wv & I.rd: n = max(n, 2)
            if I.kind == "readlane" and wv & I.rd: n = max(n, 1)
            if J.kind == "trans" and iv and I.kind != "trans" and wv & I.rd: n = max(n, 1)
            if J.kind == "trans" and I.kind in ("vstore", "dswrite") and wv & I.rd: n = max(n, 1)
            if J.kind == "dot":
                if wv & (I.rd | I.wr):
                    if I.op == J.op and not (wv & (I.rd - I.srcc)) : pass
                    else: n = max(n, 3)
        if ws:
            if iv and ws & I.rd: n = max(n, 4 if I.kind == "readlane" else 2)
            if I.kind in ("vload", "vstore", "ldsdma") and ws & I.rd: n = max(n, 5)
            if I.kind == "salu" and ws & I.rd: n = max(n, 1)
        if ("exec", 0) in J.wr:
            n = max(n, 5)
    if J.kind == "mfma":
        D = J.wr
        if I.kind == "mfma":
            if D & I.srcab: n = max(n, 12)
            if D & I.srcc and I.srcc != D: n = max(n, 10)
            if D & I.wr and I.srcc != D: n = max(n, 10)
        else:
            if D & (I.rd | I.wr): n = max(n, 12)
        if iv and J.srcc & I.wr: n = max(n, 7)
    if J.kind == "salu" and ("m0", 0) in J.wr and I.kind == "ldsdma": n = max(n, 1)
    if J.stdata and J.stdata & I.wr:
        n = max(n, 2 if iv else 1)
    return n

class Asm:
    def __init__(self):
        self.ins = []
    def __call__(self, text):
        for line in text.strip("\n").split("\n"):
            line = line.strip()
            if not line or line.startswith(";"): continue
            self.ins.append(Ins(line))
    def label(self, name):
        self.ins.append(Ins(name + ":"))
    def _pad_linear(self, seq):
        out = []
        for I in seq:
            if I.kind in ("label", "dir"):
                out.append(I); continue
            dist = 0; req = 0
            for J in reversed(out):
                if J.kind in ("label", "dir"): continue
                if dist >= 24: break
                r = need(J, I) - dist
                if r > req: req = r
                dist += J.nop if J.kind == "nop" else 1
            while req > 0:
                k = min(req, 16)
                out.append(Ins("s_nop %d" % (k - 1))); req -= k
            out.append(I)
        return out
    def finalize(self):
        out = self._pad_linear(self.ins)
        labels = {I.label: i for i, I in enumerate(out) if I.kind == "label"}
        changed = True
        while changed:
            changed = False
            labels = {I.label: i for i, I in enumerate(out) if I.kind == "label"}
            for bi, B in enumerate(out):
                if B.kind != "branch" or B.branch not in labels: continue
                li = labels[B.branch]
                pre = [J for J in out[max(0, bi - 30):bi + 1] if J.kind not in ("label", "dir")]
                post = [J for J in out[li:li + 30] if J.kind not in ("label", "dir")]
                worst = 0
                d_post = 0
                for I in post:
                    dist = d_post
                    for J in reversed(pre):
                        r = need(J, I) - dist
                        if r > worst: worst = r
                        dist += J.nop if J.kind == "nop" else 1
                        if dist > 24: break
                    d_post += I.nop if I.kind == "nop" else 1
                    if d_post > 24: break
                if worst > 0:
                    out.insert(bi, Ins("s_nop %d" % (min(worst, 16) - 1)))
                    changed = True
                    break
        return "\n".join(("" if I.kind in ("label",) else "    ") + I.text for I in out) + "\n"

class Cnt:
    def __init__(self, maxv):
        self.q = []; self.maxv = maxv
    def issue(self, tag):
        self.q.append(tag)
    def wait_for(self, tags):
        if isinstance(tags, str): tags = [tags]
        last = -1
        for i, t in enumerate(self.q):
            if t in tags: last = i
        if last < 0: return None
        n = len(self.q) - 1 - last
        n = min(n, self.maxv)
        self.q = self.q[len(self.q) - n:] if n > 0 else []
        return n
    def clear(self):
        self.q = []
```

```python
import sys
sys.path.insert(0, "dev")
from asmlib import Asm, Cnt

H_OFF = 0
PQ_OFF = 8 << 20
KVP_OFF = 12 << 20
KVF_OFF = 14 << 20
WS_BYTES = 16 << 20

NXS = 4
NWS = 6
XSLOT = 16384
WSLOT = 14336
XR = NXS * XSLOT
K1_LDS = XR + NWS * WSLOT
LOG2E = "0x3fb8aa3b"

def vr(b, n=1):
    return "v%d" % b if n == 1 else "v[%d:%d]" % (b, b + n - 1)
def sr(b, n=1):
    return "s%d" % b if n == 1 else "s[%d:%d]" % (b, b + n - 1)

def srd(A, dst, lo, nbytes):
    A(f"""
    s_mov_b32 s{dst}, s{lo}
    s_mov_b32 s{dst+1}, s{lo+1}
    s_mov_b32 s{dst+2}, {nbytes}
    s_mov_b32 s{dst+3}, 0x00020000
    """)

def k1_vm_counts():
    seq = []
    def G(j):
        if j % 2 == 0:
            c = j // 2 - 1 + NXS
            if c >= 0: seq.extend([("x", c)] * 2)
        w = j - 1 + NWS
        if w >= 0: seq.extend([("w", w)] * 2)
    j0 = min(2 - 2 * NXS, 1 - NWS)
    res = {}
    for j in range(j0, 0): G(j)
    def cnt(need):
        last = max(i for i, t in enumerate(seq) if t in need)
        return len(seq) - 1 - last
    res[-1] = cnt([("w", 0), ("x", 0)])
    for j in range(0, 16):
        nd = [("w", j + 1)]
        if (j + 1) % 2 == 0: nd.append(("x", (j + 1) // 2))
        res[j] = cnt(nd)
        G(j)
    ev = min(res[j] for j in range(0, 16, 2)); od = min(res[j] for j in range(1, 16, 2))
    return res[-1], ev, od, j0

def gen_k1(A):
    S_X, S_WQ, S_W1, S_WS, S_WP = 8, 12, 16, 20, 24
    sW, sMW, sNH, sRB, sCG, sTY = 36, 37, 38, 39, 40, 41
    sXS, sWSO, sXW, sWW, sXRD, sWRD, sCNT, sT, sEX = 42, 43, 44, 45, 46, 47, 48, 49, 50
    sONES, sT2, sT3 = 52, 53, 54
    sP1 = 56
    sL = 58
    sMSK = 60
    vL = 1
    vXO0, vXO1, vWO = 2, 3, 4
    vXA = 5
    vXR = 9
    vWA, vWR = 13, 14
    vSUM, vSQ = 15, 16
    vCS = 17
    vWPH = 24
    F = [32, 52]
    ACC = 72
    vT = 136
    A.label("k1_kernel")
    A(f"""
    s_cmp_ge_u32 s2, 256
    s_cbranch_scc1 k1_end
    s_load_dwordx2 s[4:5], s[0:1], 0
    s_load_dwordx4 s[28:31], s[0:1], 8
    s_load_dwordx2 s[32:33], s[0:1], 40
    s_load_dwordx2 s[34:35], s[0:1], 72
    v_lshrrev_b32 v2, 6, v0
    v_and_b32 v{vL}, 63, v0
    v_readfirstlane_b32 s{sW}, v2
    s_and_b32 s{sT}, s2, 7
    s_lshr_b32 s{sT2}, s2, 3
    s_and_b32 s{sRB}, s{sT}, 1
    s_lshl_b32 s{sRB}, s{sRB}, 3
    s_and_b32 s{sT3}, s{sT2}, 7
    s_add_u32 s{sRB}, s{sRB}, s{sT3}
    s_lshr_b32 s{sT2}, s{sT2}, 3
    s_lshr_b32 s{sTY}, s{sT2}, 1
    s_and_b32 s{sT2}, s{sT2}, 1
    s_lshr_b32 s{sCG}, s{sT}, 1
    s_lshl_b32 s{sCG}, s{sCG}, 1
    s_add_u32 s{sCG}, s{sCG}, s{sT2}
    s_and_b32 s{sMW}, s{sW}, 3
    s_lshr_b32 s{sNH}, s{sW}, 2
    s_mov_b32 s{sONES}, 0x3f803f80
    s_mov_b32 s{sP1}, 1.0
    s_mov_b32 s{sP1+1}, 1.0
    s_mov_b32 s{sL}, {LOG2E}
    s_mov_b32 s{sL+1}, {LOG2E}
    s_mov_b32 s{sMSK}, 0xffff0000
    s_mov_b32 s{sMSK+1}, 0xffff0000
    """)
    A(f"""
    s_lshl_b32 s{sT}, s{sRB}, 7
    s_lshl_b32 s{sT2}, s{sW}, 4
    s_add_u32 s{sT}, s{sT}, s{sT2}
    v_lshrrev_b32 v{vT}, 3, v{vL}
    v_add_u32 v{vT}, s{sT}, v{vT}
    v_lshlrev_b32 v{vT}, 10, v{vT}
    v_and_b32 v{vT+1}, 7, v{vL}
    v_lshrrev_b32 v{vT+2}, 4, v{vL}
    v_xor_b32 v{vT+3}, v{vT+1}, v{vT+2}
    v_lshl_add_u32 v{vXO0}, v{vT+3}, 4, v{vT}
    v_xor_b32 v{vT+3}, 4, v{vT+3}
    v_lshl_add_u32 v{vXO1}, v{vT+3}, 4, v{vT}
    v_add_u32 v{vXO1}, 0x2000, v{vXO1}
    """)
    A(f"""
    s_lshl_b32 s{sT}, s{sMW}, 5
    v_and_b32 v{vT}, 31, v{vL}
    v_add_u32 v{vT}, s{sT}, v{vT}
    v_bfe_u32 v{vT+1}, v{vT}, 1, 3
    v_lshrrev_b32 v{vT+2}, 5, v{vL}
    v_xor_b32 v{vT+1}, v{vT+1}, v{vT+2}
    v_lshlrev_b32 v{vT}, 7, v{vT}
    """)
    for k in range(4):
        A(f"""
        v_xor_b32 v{vT+3}, {2*k}, v{vT+1}
        v_lshl_add_u32 v{vXA+k}, v{vT+3}, 4, v{vT}
        """)
    A(f"""
    v_lshrrev_b32 v{vT}, 5, v{vL}
    v_lshlrev_b32 v{vT}, 3, v{vT}
    v_bfe_u32 v{vT+1}, v{vL}, 2, 2
    v_add_u32 v{vT}, v{vT}, v{vT+1}
    v_mul_u32_u24 v{vT}, 448, v{vT}
    v_bfe_u32 v{vT+1}, v{vL}, 4, 1
    v_lshl_add_u32 v{vT}, v{vT+1}, 5, v{vT}
    v_and_b32 v{vT+1}, 3, v{vL}
    v_lshl_add_u32 v{vWA}, v{vT+1}, 3, v{vT}
    """)
    A(f"""
    v_cmp_le_u32 vcc, 28, v{vL}
    v_cndmask_b32 v{vT}, 0, 1, vcc
    v_mul_u32_u24 v{vT+1}, 28, v{vT}
    v_sub_u32 v{vT+1}, v{vL}, v{vT+1}
    s_lshl_b32 s{sT}, s{sW}, 2
    v_add_u32 v{vT}, s{sT}, v{vT}
    """)
    A(f"""
    s_mov_b32 s{sXS}, 0
    s_mov_b32 s{sWSO}, 0
    s_lshl_b32 s{sXW}, s{sW}, 11
    s_mul_i32 s{sWW}, s{sW}, 1792
    s_add_u32 s{sWW}, s{sWW}, {XR}
    s_mov_b32 s{sXRD}, 0
    s_mov_b32 s{sWRD}, {XR}
    s_waitcnt lgkmcnt(0)
    """)
    srd(A, S_X, 4, 2097152)
    srd(A, S_WQ, 28, 1572864)
    srd(A, S_WP, 30, 16384)
    srd(A, S_W1, 32, 1835008)
    srd(A, S_WS, 34, WS_BYTES)
    A(f"""
    s_cmp_eq_u32 s{sTY}, 0
    s_cbranch_scc0 k1_typeB
    """)
    c_first, c_ev, c_od, j0 = k1_vm_counts()

    def dma_x():
        A(f"""
        s_mov_b32 m0, s{sXW}
        s_add_u32 s{sT2}, s{sXW}, 1024
        buffer_load_dwordx4 v{vXO0}, s[{S_X}:{S_X+3}], s{sXS} offen lds
        s_mov_b32 m0, s{sT2}
        s_add_u32 s{sXW}, s{sXW}, {XSLOT}
        buffer_load_dwordx4 v{vXO1}, s[{S_X}:{S_X+3}], s{sXS} offen lds
        s_add_u32 s{sXS}, s{sXS}, 128
        s_cmp_ge_u32 s{sXS}, 1024
        s_cselect_b32 s{sXS}, 0x40000000, s{sXS}
        s_cmp_ge_u32 s{sXW}, {NXS*XSLOT}
        s_cselect_b32 s{sT2}, {NXS*XSLOT}, 0
        s_sub_u32 s{sXW}, s{sXW}, s{sT2}
        """)
    def dma_w(S, stride):
        A(f"""
        s_mov_b64 exec, s[{sEX}:{sEX+1}]
        s_mov_b32 m0, s{sWW}
        s_add_u32 s{sT}, s{sWSO}, {2*stride}
        buffer_load_dwordx4 v{vWO}, s[{S}:{S+3}], s{sWSO} offen lds
        s_add_u32 m0, s{sWW}, 896
        s_add_u32 s{sWSO}, s{sWSO}, {32*stride}
        buffer_load_dwordx4 v{vWO}, s[{S}:{S+3}], s{sT} offen lds
        s_mov_b64 exec, -1
        s_add_u32 s{sWW}, s{sWW}, {WSLOT}
        s_cmp_ge_u32 s{sWW}, {XR+NWS*WSLOT}
        s_cselect_b32 s{sT}, {NWS*WSLOT}, 0
        s_sub_u32 s{sWW}, s{sWW}, s{sT}
        """)
    def G(j, S, stride):
        if j % 2 == 0 and j // 2 - 1 + NXS >= 0: dma_x()
        if j - 1 + NWS >= 0: dma_w(S, stride)
    def reads(fs, xk, sp, toffs):
        b = F[fs]
        A(f"ds_read_b128 {vr(b,4)}, v{vXR+xk}")
        for t, to in enumerate(toffs):
            A(f"ds_read_b64_tr_b16 {vr(b+4+4*t,2)}, v{vWR} offset:{sp*7168+to}")
            A(f"ds_read_b64_tr_b16 {vr(b+6+4*t,2)}, v{vWR} offset:{sp*7168+1792+to}")
    def compute(fs, NT):
        b = F[fs]
        dots = []
        for r in range(4):
            for t in range(NT):
                dots.append(f"v_dot2c_f32_bf16 v{vCS+t}, s{sONES}, v{b+4+4*t+r}")
            dots.append(f"v_dot2c_f32_bf16 v{vSUM}, s{sONES}, v{b+r}")
            dots.append(f"v_dot2c_f32_bf16 v{vSQ}, v{b+r}, v{b+r}")
        per = (len(dots) + NT - 1) // NT
        for t in range(NT):
            A(f"v_mfma_f32_32x32x16_bf16 {vr(ACC+16*t,16)}, {vr(b+4+4*t,4)}, {vr(b,4)}, {vr(ACC+16*t,16)}")
            for d in dots[t*per:(t+1)*per]: A(d)
    def adv_wrd():
        A(f"""
        s_add_u32 s{sWRD}, s{sWRD}, {WSLOT}
        s_cmp_ge_u32 s{sWRD}, {XR+NWS*WSLOT}
        s_cselect_b32 s{sT}, {NWS*WSLOT}, 0
        s_sub_u32 s{sWRD}, s{sWRD}, s{sT}
        v_add_u32 v{vWR}, s{sWRD}, v{vWA}
        """)
    def adv_xrd():
        A(f"""
        s_add_u32 s{sXRD}, s{sXRD}, {XSLOT}
        s_cmp_ge_u32 s{sXRD}, {NXS*XSLOT}
        s_cselect_b32 s{sXRD}, 0, s{sXRD}
        """)
        for k in range(4): A(f"v_add_u32 v{vXR+k}, s{sXRD}, v{vXA+k}")

    def prologue(S, stride):
        for j in range(j0, 0): G(j, S, stride)
        for i in range(64): A(f"v_mov_b32 v{ACC+i}, 0")
        for i in range(6): A(f"v_mov_b32 v{vSUM+i}, 0")
        A(f"v_add_u32 v{vWR}, s{sWRD}, v{vWA}")
        for k in range(4): A(f"v_mov_b32 v{vXR+k}, v{vXA+k}")
        A(f"s_mov_b32 s{sCNT}, 8")
    def mainloop(name, S, stride, toffs):
        NT = len(toffs)
        nr = 2 * NT + 1
        A(f"""
        s_waitcnt vmcnt({c_first})
        s_barrier
        """)
        reads(0, 0, 0, toffs)
        A.label(name)
        for a in range(2):
            reads(1, 2 * a + 1, 1, toffs)
            A(f"s_waitcnt lgkmcnt({nr})")
            compute(0, NT)
            A(f"s_waitcnt vmcnt({c_ev if a == 0 else c_od})")
            A("s_barrier")
            G(a, S, stride)
            adv_wrd()
            if a == 1: adv_xrd()
            reads(0, (2 * a + 2) % 4, 0, toffs)
            A(f"s_waitcnt lgkmcnt({nr})")
            compute(1, NT)
        A(f"""
        s_sub_u32 s{sCNT}, s{sCNT}, 1
        s_cmp_lg_u32 s{sCNT}, 0
        s_cbranch_scc1 {name}
        """)
    vR, vNE = vT, vT + 2
    vBA = vT + 4
    vAA = vT + 8
    vQ = vT + 12
    def stats(NT):
        A(f"""
        v_mov_b32 v{vQ}, v{vSUM}
        v_mov_b32 v{vQ+1}, v{vSQ}
        v_permlane32_swap_b32 v{vSUM}, v{vQ}
        v_permlane32_swap_b32 v{vSQ}, v{vQ+1}
        v_add_f32 v{vSUM}, v{vSUM}, v{vQ}
        v_add_f32 v{vSQ}, v{vSQ}, v{vQ+1}
        v_mul_f32 v{vSUM}, 0xbb000000, v{vSUM}
        v_mul_f32 v{vSQ}, 0x3b000000, v{vSQ}
        v_fma_f32 v{vSQ}, -v{vSUM}, v{vSUM}, v{vSQ}
        v_add_f32 v{vSQ}, 0x3727c5ac, v{vSQ}
        v_rsq_f32 v{vR}, v{vSQ}
        v_cvt_pk_bf16_f32 v{vQ}, v{vSUM}, v{vSUM}
        v_and_b32 v{vQ}, 0xffff0000, v{vQ}
        v_sub_f32 v{vQ}, v{vSUM}, v{vQ}
        v_cvt_pk_bf16_f32 v{vBA}, v{vSUM}, v{vQ}
        v_mov_b32 v{vBA+1}, v{vBA}
        v_mov_b32 v{vBA+2}, 0
        v_mov_b32 v{vBA+3}, 0
        v_mul_f32 v{vNE}, 0xbfb8aa3b, v{vR}
        """)
        for t in range(NT):
            aa = vAA if t % 2 == 0 else vQ + 4
            A(f"""
            v_cvt_pk_bf16_f32 v{aa}, v{vCS+t}, v{vCS+t}
            v_and_b32 v{vQ}, 0xffff0000, v{aa}
            v_sub_f32 v{vQ}, v{vCS+t}, v{vQ}
            v_cvt_pk_bf16_f32 v{aa+1}, v{vQ}, v{vQ}
            v_mov_b32 v{aa+2}, 0
            v_mov_b32 v{aa+3}, 0
            v_mfma_f32_32x32x16_bf16 {vr(ACC+16*t,16)}, {vr(aa,4)}, {vr(vBA,4)}, {vr(ACC+16*t,16)}
            """)

    A(f"""
    v_mul_u32_u24 v{vWO}, 3072, v{vT}
    v_lshrrev_b32 v{vT+2}, 3, v{vT+1}
    v_lshl_add_u32 v{vWO}, v{vT+2}, 10, v{vWO}
    v_and_b32 v{vT+2}, 7, v{vT+1}
    v_lshl_add_u32 v{vWO}, v{vT+2}, 4, v{vWO}
    s_lshl_b32 s{sT}, s{sCG}, 7
    v_add_u32 v{vWO}, s{sT}, v{vWO}
    v_cmp_le_u32 vcc, 24, v{vT+1}
    v_mov_b32 v{vT+2}, 0x40000000
    v_cndmask_b32 v{vWO}, v{vWO}, v{vT+2}, vcc
    s_mov_b32 s{sEX}, 0xffffffff
    s_mov_b32 s{sEX+1}, 0x00ffffff
    """)
    A(f"""
    s_lshl_b32 s{sT}, s{sCG}, 2
    s_lshl_b32 s{sT2}, s{sNH}, 1
    s_add_u32 s{sT3}, s{sT}, s{sT2}
    s_lshl_b32 s{sT}, s{sT3}, 9
    v_and_b32 v{vT+2}, 15, v{vL}
    v_lshlrev_b32 v{vT+2}, 1, v{vT+2}
    v_lshrrev_b32 v{vT+3}, 5, v{vL}
    v_lshl_add_u32 v{vT+2}, v{vT+3}, 7, v{vT+2}
    """)
    for a in range(2):
        for jj in range(8):
            d = jj if jj < 4 else 8 + jj - 4
            reg = vT + 4 + 8 * a + jj
            A(f"buffer_load_ushort v{reg}, v{vT+2}, s[{S_WP}:{S_WP+3}], s{sT} offen offset:{a*512+d*32}")
    prologue(S_WQ, 3072)
    A(f"""
    s_lshl_b32 s{sT}, s{sNH}, 6
    v_add_u32 v{vWA}, s{sT}, v{vWA}
    v_add_u32 v{vWR}, s{sT}, v{vWR}
    """)
    mainloop("k1_loopA", S_WQ, 3072, [0, 128, 256])
    A("s_waitcnt vmcnt(0) lgkmcnt(0)")
    A("s_barrier")
    for i in range(8): A(f"v_lshl_or_b32 v{vWPH+i}, v{vT+5+2*i}, 16, v{vT+4+2*i}")
    stats(3)
    A(f"""
    v_mov_b32 v{vQ}, 0
    v_mov_b32 v{vQ+1}, 0x80008000
    v_cndmask_b32 v{vQ}, v{vQ}, v{vQ+1}, s[{sMSK}:{sMSK+1}]
    """)
    for i in range(8): A(f"v_xor_b32 v{vWPH+i}, v{vWPH+i}, v{vQ}")
    vLW = vQ + 2
    vPQA = vQ + 4
    A(f"""
    s_lshl_b32 s{sT}, s{sMW}, 5
    v_and_b32 v{vQ}, 31, v{vL}
    v_add_u32 v{vQ}, s{sT}, v{vQ}
    v_bfe_u32 v{vQ+1}, v{vQ}, 1, 2
    v_lshrrev_b32 v{vLW}, 5, v{vL}
    v_xor_b32 v{vQ+1}, v{vQ+1}, v{vLW}
    v_lshlrev_b32 v{vQ}, 6, v{vQ}
    v_lshl_add_u32 v{vLW}, v{vQ+1}, 4, v{vQ}
    v_xor_b32 v{vQ+1}, 2, v{vQ+1}
    v_lshl_add_u32 v{vLW+1}, v{vQ+1}, 4, v{vQ}
    v_lshlrev_b32 v{vPQA}, 4, v{vL}
    """)
    vFR = 32
    for t in range(3):
        for p in range(8):
            A(f"v_pk_mul_f32 {vr(ACC+16*t+2*p,2)}, {vr(ACC+16*t+2*p,2)}, {vr(vR,2)} op_sel_hi:[1,0]")
        for p in range(8):
            A(f"v_cvt_pk_bf16_f32 v{vFR+8*t+p}, v{ACC+16*t+2*p}, v{ACC+16*t+2*p+1}")
    A(f"""
    s_lshl_b32 s{sT}, s{sNH}, 13
    s_add_u32 s{sT}, s{sT}, 32768
    v_add_u32 v{vQ}, s{sT}, v{vLW}
    v_add_u32 v{vQ+1}, s{sT}, v{vLW+1}
    ds_write_b128 v{vQ}, {vr(vFR+16,4)}
    ds_write_b128 v{vQ+1}, {vr(vFR+20,4)}
    """)
    for i in range(4):
        A(f"v_mfma_f32_32x32x16_bf16 {vr(ACC+16*i,16)}, {vr(vWPH+4*(i&1),4)}, {vr(vFR+4*i,4)}, 0")
    A(f"""
    s_lshl_b32 s{sT}, s{sRB}, 2
    s_add_u32 s{sT}, s{sT}, s{sMW}
    s_lshl_b32 s{sT}, s{sT}, 5
    s_add_u32 s{sT}, s{sT}, s{sT3}
    s_lshl_b32 s{sT}, s{sT}, 11
    s_add_u32 s{sT}, s{sT}, {PQ_OFF}
    s_lshl_b32 s{sT2}, s{sNH}, 14
    v_add_u32 v{vLW}, s{sT2}, v{vLW}
    v_add_u32 v{vLW+1}, s{sT2}, v{vLW+1}
    """)
    vM = vQ + 6
    assert vM % 2 == 0
    for i in range(4):
        P = ACC + 16 * i
        A(f"""
        v_max3_f32 v{vM}, v{P}, v{P+1}, v{P+2}
        v_max3_f32 v{vM+2}, v{P+8}, v{P+9}, v{P+10}
        v_max3_f32 v{vM}, v{vM}, v{P+3}, v{P+4}
        v_max3_f32 v{vM+2}, v{vM+2}, v{P+11}, v{P+12}
        v_max3_f32 v{vM}, v{vM}, v{P+5}, v{P+6}
        v_max3_f32 v{vM+2}, v{vM+2}, v{P+13}, v{P+14}
        v_max_f32 v{vM}, v{vM}, v{P+7}
        v_max_f32 v{vM+2}, v{vM+2}, v{P+15}
        v_permlane32_swap_b32 v{vM}, v{vM+2}
        v_max_f32 v{vM}, v{vM}, v{vM+2}
        v_mul_f32 v{vM}, 0xbfb8aa3b, v{vM}
        v_mov_b32 v{vM+2}, v{vM}
        v_permlane32_swap_b32 v{vM}, v{vM+2}
        """)
        for p in range(8):
            m = vM if p < 4 else vM + 2
            A(f"v_pk_fma_f32 {vr(P+2*p,2)}, {vr(P+2*p,2)}, s[{sL}:{sL+1}], {vr(m,2)} op_sel_hi:[1,1,0]")
        for e in range(16):
            A(f"v_exp_f32 v{P+e}, v{P+e}")
        A(f"""
        v_pk_add_f32 {vr(vM,2)}, {vr(P,2)}, {vr(P+2,2)}
        v_pk_add_f32 {vr(vM+2,2)}, {vr(P+8,2)}, {vr(P+10,2)}
        v_pk_add_f32 {vr(vM+4,2)}, {vr(P+4,2)}, {vr(P+6,2)}
        v_pk_add_f32 {vr(vM+6,2)}, {vr(P+12,2)}, {vr(P+14,2)}
        v_pk_add_f32 {vr(vM,2)}, {vr(vM,2)}, {vr(vM+4,2)}
        v_pk_add_f32 {vr(vM+2,2)}, {vr(vM+2,2)}, {vr(vM+6,2)}
        v_add_f32 v{vM}, v{vM}, v{vM+1}
        v_add_f32 v{vM+2}, v{vM+2}, v{vM+3}
        v_permlane32_swap_b32 v{vM}, v{vM+2}
        v_add_f32 v{vM}, v{vM}, v{vM+2}
        v_rcp_f32 v{vM}, v{vM}
        v_mov_b32 v{vM+2}, v{vM}
        v_permlane32_swap_b32 v{vM}, v{vM+2}
        """)
        for p in range(8):
            m = vM if p < 4 else vM + 2
            A(f"v_pk_mul_f32 {vr(P+2*p,2)}, {vr(P+2*p,2)}, {vr(m,2)} op_sel_hi:[1,0]")
        O = vFR + 8 * (i & 1)
        for p in range(8):
            A(f"v_cvt_pk_bf16_f32 v{O+p}, v{P+2*p}, v{P+2*p+1}")
        if i < 2:
            A(f"""
            buffer_store_dwordx4 {vr(O,4)}, v{vPQA}, s[{S_WS}:{S_WS+3}], s{sT} offen offset:{2048*i}
            buffer_store_dwordx4 {vr(O+4,4)}, v{vPQA}, s[{S_WS}:{S_WS+3}], s{sT} offen offset:{2048*i+1024}
            """)
        else:
            A(f"""
            ds_write_b128 v{vLW}, {vr(O,4)} offset:{8192*(i&1)}
            ds_write_b128 v{vLW+1}, {vr(O+4,4)} offset:{8192*(i&1)}
            """)
    A(f"""
    s_waitcnt lgkmcnt(0)
    s_barrier
    s_cmp_ge_u32 s{sW}, 4
    s_cbranch_scc1 k1_end
    """)
    vKB, vKA = vQ, vQ + 2
    A(f"""
    v_lshrrev_b32 v{vM}, 5, v{vL}
    v_lshlrev_b32 v{vM}, 3, v{vM}
    v_bfe_u32 v{vM+1}, v{vL}, 2, 2
    v_add_u32 v{vM}, v{vM}, v{vM+1}
    v_lshlrev_b32 v{vM}, 6, v{vM}
    v_and_b32 v{vM+2}, 1, v{vL}
    v_lshl_add_u32 v{vM}, v{vM+2}, 3, v{vM}
    v_bfe_u32 v{vM+1}, v{vL}, 3, 1
    v_bfe_u32 v{vM+2}, v{vL}, 1, 1
    v_xor_b32 v{vM+1}, v{vM+1}, v{vM+2}
    v_bfe_u32 v{vM+2}, v{vL}, 4, 1
    v_lshl_add_u32 v{vM+3}, v{vM+2}, 1, v{vM+1}
    s_lshl_b32 s{sT}, s{sW}, 13
    v_lshl_add_u32 v{vKB}, v{vM+3}, 4, v{vM}
    v_add_u32 v{vKB}, s{sT}, v{vKB}
    v_xor_b32 v{vM+3}, 2, v{vM+3}
    v_lshl_add_u32 v{vKB+1}, v{vM+3}, 4, v{vM}
    v_add_u32 v{vKB+1}, s{sT}, v{vKB+1}
    s_and_b32 s{sT2}, s{sW}, 1
    s_lshl_b32 s{sT2}, s{sT2}, 1
    v_or_b32 v{vM+3}, s{sT2}, v{vM+1}
    s_lshr_b32 s{sT}, s{sW}, 1
    s_lshl_b32 s{sT}, s{sT}, 13
    s_add_u32 s{sT}, s{sT}, 32768
    v_lshl_add_u32 v{vKA}, v{vM+3}, 4, v{vM}
    v_add_u32 v{vKA}, s{sT}, v{vKA}
    v_xor_b32 v{vM+3}, 2, v{vM+3}
    v_lshl_add_u32 v{vKA+1}, v{vM+3}, 4, v{vM}
    v_add_u32 v{vKA+1}, s{sT}, v{vKA+1}
    v_mov_b32 v{vM}, 0x3f803f80
    """)
    KF = ACC + 16
    for half in range(2):
        for k in range(4):
            ks = half * 4 + k
            b = KF + 8 * k
            A(f"""
            ds_read_b64_tr_b16 {vr(b,2)}, v{vKA} offset:{ks*1024}
            ds_read_b64_tr_b16 {vr(b+2,2)}, v{vKA+1} offset:{ks*1024+256}
            ds_read_b64_tr_b16 {vr(b+4,2)}, v{vKB} offset:{ks*1024}
            ds_read_b64_tr_b16 {vr(b+6,2)}, v{vKB+1} offset:{ks*1024+256}
            """)
        for k in range(4):
            ks = half * 4 + k
            b = KF + 8 * k
            A(f"s_waitcnt lgkmcnt({4*(3-k)})")
            for r in range(4):
                A(f"v_cndmask_b32 v{b+r}, v{b+r}, v{vM}, s[{sMSK}:{sMSK+1}]")
            c = "0" if ks == 0 else vr(ACC, 16)
            A(f"v_mfma_f32_32x32x16_bf16 {vr(ACC,16)}, {vr(b,4)}, {vr(b+4,4)}, {c}")
    A(f"""
    s_lshl_b32 s{sT}, s{sRB}, 5
    s_lshl_b32 s{sT2}, s{sCG}, 2
    s_add_u32 s{sT}, s{sT}, s{sT2}
    s_add_u32 s{sT}, s{sT}, s{sW}
    s_mul_i32 s{sT}, s{sT}, 2176
    s_add_u32 s{sT}, s{sT}, {KVP_OFF}
    v_and_b32 v{vM+1}, 31, v{vL}
    v_lshlrev_b32 v{vM+1}, 2, v{vM+1}
    v_lshrrev_b32 v{vM+2}, 5, v{vL}
    v_lshl_add_u32 v{vM+1}, v{vM+2}, 9, v{vM+1}
    """)
    for i in range(8):
        row = 8 * (i >> 2) + (i & 3)
        A(f"buffer_store_dword v{ACC+i}, v{vM+1}, s[{S_WS}:{S_WS+3}], s{sT} offen offset:{row*128}")
    A(f"""
    s_mov_b32 exec_hi, 0
    buffer_store_dword v{ACC+8}, v{vM+1}, s[{S_WS}:{S_WS+3}], s{sT} offen offset:{16*128}
    s_endpgm
    """)

    A.label("k1_typeB")
    A(f"""
    v_mul_u32_u24 v{vWO}, 3584, v{vT}
    v_lshl_add_u32 v{vWO}, v{vT+1}, 4, v{vWO}
    s_mul_i32 s{sT}, s{sCG}, 448
    v_add_u32 v{vWO}, s{sT}, v{vWO}
    s_mov_b32 s{sEX}, 0xffffffff
    s_mov_b32 s{sEX+1}, 0x00ffffff
    """)
    prologue(S_W1, 3584)
    A(f"""
    s_cmp_eq_u32 s{sNH}, 0
    s_cbranch_scc0 k1_typeB1
    """)
    def epiB(NT):
        A("s_waitcnt vmcnt(0) lgkmcnt(0)")
        stats(NT)
        A(f"""
        s_lshl_b32 s{sT}, s{sRB}, 2
        s_add_u32 s{sT}, s{sT}, s{sMW}
        s_mul_i32 s{sT}, s{sT}, 112
        s_mul_i32 s{sT2}, s{sCG}, 14
        s_add_u32 s{sT}, s{sT}, s{sT2}
        s_lshl_b32 s{sT2}, s{sNH}, 3
        s_add_u32 s{sT}, s{sT}, s{sT2}
        s_lshl_b32 s{sT}, s{sT}, 10
        v_lshlrev_b32 v{vQ}, 4, v{vL}
        """)
        for t in range(NT):
            P = ACC + 16 * t
            E = 32 + 16 * (t & 1)
            O = 24 if (t & 1) == 0 else 64
            for p in range(8):
                A(f"v_pk_mul_f32 {vr(E+2*p,2)}, {vr(P+2*p,2)}, {vr(vNE,2)} op_sel_hi:[1,0]")
            for e in range(16):
                A(f"v_exp_f32 v{E+e}, v{E+e}")
            for p in range(8):
                A(f"v_pk_mul_f32 {vr(P+2*p,2)}, {vr(P+2*p,2)}, {vr(vR,2)} op_sel_hi:[1,0]")
            for p in range(8):
                A(f"v_pk_add_f32 {vr(E+2*p,2)}, {vr(E+2*p,2)}, s[{sP1}:{sP1+1}]")
            for e in range(16):
                A(f"v_rcp_f32 v{E+e}, v{E+e}")
            for p in range(8):
                A(f"v_pk_mul_f32 {vr(P+2*p,2)}, {vr(P+2*p,2)}, {vr(E+2*p,2)}")
            for p in range(8):
                A(f"v_cvt_pk_bf16_f32 v{O+p}, v{P+2*p}, v{P+2*p+1}")
            A(f"""
            buffer_store_dwordx4 {vr(O,4)}, v{vQ}, s[{S_WS}:{S_WS+3}], s{sT} offen
            buffer_store_dwordx4 {vr(O+4,4)}, v{vQ}, s[{S_WS}:{S_WS+3}], s{sT} offen offset:1024
            s_add_u32 s{sT}, s{sT}, 2048
            """)
        A("s_endpgm")
    mainloop("k1_loopB0", S_W1, 3584, [0, 64, 128, 192])
    epiB(4)
    A.label("k1_typeB1")
    mainloop("k1_loopB1", S_W1, 3584, [256, 320, 384])
    epiB(3)
    A.label("k1_end")
    A("s_endpgm")
    return 168

def kr_body(A, S_WS, sG, sT, vL, vb, sc=""):
    vI, vO, vD = vb, vb + 1, vb + 4
    A(f"""
    s_and_b32 s{sT}, s{sG}, 7
    s_mul_i32 s{sT}, s{sT}, 17
    v_add_u32 v{vI}, s{sT}, v{vL}
    s_lshr_b32 s{sT+1}, s{sG}, 3
    s_mul_i32 s{sT}, s{sT+1}, 2176
    s_add_u32 s{sT}, s{sT}, {KVP_OFF}
    v_lshlrev_b32 v{vO}, 4, v{vI}
    s_mov_b64 exec, 0x1ffff
    """)
    for p in range(16):
        A(f"buffer_load_dwordx4 {vr(vD+4*p,4)}, v{vO}, s[{S_WS}:{S_WS+3}], s{sT} offen")
        if p < 15: A(f"s_add_u32 s{sT}, s{sT}, 69632")
    A(f"""
    v_bfe_u32 v{vO}, v{vI}, 2, 1
    v_lshlrev_b32 v{vO}, 10, v{vO}
    v_bfe_u32 v{vO+1}, v{vI}, 1, 1
    v_lshl_add_u32 v{vO}, v{vO+1}, 9, v{vO}
    v_lshrrev_b32 v{vO+1}, 3, v{vI}
    v_lshl_add_u32 v{vO}, v{vO+1}, 4, v{vO}
    v_and_b32 v{vO+2}, 1, v{vI}
    v_lshl_add_u32 v{vO}, v{vO+2}, 3, v{vO}
    s_lshl_b32 s{sT}, s{sT+1}, 11
    s_add_u32 s{sT}, s{sT}, {KVF_OFF}
    v_cmp_eq_u32 vcc, 16, v{vO+1}
    """)
    return vI, vO, vD

def kr_finish(A, S_WS, sT, vO, vD, sc=""):
    n = 16
    while n > 1:
        for p in range(n // 2):
            A(f"v_pk_add_f32 {vr(vD+4*p,2)}, {vr(vD+8*p,2)}, {vr(vD+8*p+4,2)}")
            A(f"v_pk_add_f32 {vr(vD+4*p+2,2)}, {vr(vD+8*p+2,2)}, {vr(vD+8*p+6,2)}")
        n //= 2
    A(f"""
    v_cvt_pk_bf16_f32 v{vD}, v{vD}, v{vD+1}
    v_cvt_pk_bf16_f32 v{vD+1}, v{vD+2}, v{vD+3}
    buffer_store_dwordx2 {vr(vD,2)}, v{vO}, s[{S_WS}:{S_WS+3}], s{sT} offen {sc}
    s_mov_b64 exec, vcc
    buffer_store_dwordx2 {vr(vD,2)}, v{vO}, s[{S_WS}:{S_WS+3}], s{sT} offen offset:64 {sc}
    s_mov_b64 exec, -1
    """)

def gen_kr(A):
    A.label("kr_kernel")
    A(f"""
    s_cmp_ge_u32 s2, 256
    s_cbranch_scc1 kr_end
    s_load_dwordx2 s[4:5], s[0:1], 72
    s_waitcnt lgkmcnt(0)
    """)
    srd(A, 8, 4, WS_BYTES)
    vI, vO, vD = kr_body(A, 8, 2, 20, 0, 2)
    A("s_waitcnt vmcnt(0)")
    kr_finish(A, 8, 20, vO, vD)
    A.label("kr_end")
    A("s_endpgm")
    return 80

K2_LDS = 8 * 20480
def gen_k2(A):
    S_WS, S_W2, S_WO, S_X, S_O = 8, 12, 16, 20, 24
    sW, sRB, sCB, sT, sT2, sT3 = 36, 37, 38, 39, 40, 41
    sH0, sH1, sRING, sKW, sPQ0, sPQ1, sKVF, sEPS = 42, 43, 44, 45, 46, 47, 48, 49
    vL, vL16, vW2O, vWOO, vTR = 1, 2, 3, 4, 5
    vXRES = 8
    vT = 12
    WF = [16, 24]
    ACC = 32
    HF = 96
    ND = 208
    OF = 240
    A.label("k2_kernel")
    A(f"""
    s_cmp_ge_u32 s2, 256
    s_cbranch_scc1 k2_end
    s_load_dwordx2 s[4:5], s[0:1], 0
    s_load_dwordx2 s[6:7], s[0:1], 24
    s_load_dwordx4 s[28:31], s[0:1], 48
    s_load_dwordx2 s[32:33], s[0:1], 72
    v_lshrrev_b32 v2, 6, v0
    v_and_b32 v{vL}, 63, v0
    v_readfirstlane_b32 s{sW}, v2
    s_and_b32 s{sT}, s2, 7
    s_lshr_b32 s{sT2}, s2, 3
    s_lshl_b32 s{sRB}, s{sT}, 2
    s_and_b32 s{sT3}, s{sT2}, 3
    s_add_u32 s{sRB}, s{sRB}, s{sT3}
    s_lshr_b32 s{sCB}, s{sT2}, 2
    v_lshlrev_b32 v{vL16}, 4, v{vL}
    s_mov_b32 s{sEPS}, 0x358637bd
    """)
    A(f"""
    v_and_b32 v{vT}, 7, v{vL}
    v_bfe_u32 v{vT+1}, v{vL}, 4, 1
    v_lshlrev_b32 v{vT+1}, 2, v{vT+1}
    v_xor_b32 v{vT}, v{vT}, v{vT+1}
    v_lshlrev_b32 v{vT}, 4, v{vT}
    s_lshl_b32 s{sT}, s{sCB}, 7
    v_add_u32 v{vT}, s{sT}, v{vT}
    v_lshrrev_b32 v{vT+1}, 3, v{vL}
    v_lshl_add_u32 v{vW2O}, v{vT+1}, 10, v{vT}
    v_bfe_u32 v{vT+1}, v{vL}, 3, 2
    v_lshrrev_b32 v{vT+2}, 5, v{vL}
    v_lshl_add_u32 v{vT+1}, v{vT+2}, 3, v{vT+1}
    v_lshl_add_u32 v{vWOO}, v{vT+1}, 10, v{vT}
    """)
    A(f"""
    s_mul_i32 s{sRING}, s{sW}, 20480
    v_lshrrev_b32 v{vT}, 5, v{vL}
    v_bfe_u32 v{vT+1}, v{vL}, 2, 2
    v_lshl_add_u32 v{vT}, v{vT}, 2, v{vT+1}
    v_lshlrev_b32 v{vT}, 7, v{vT}
    v_bfe_u32 v{vT+1}, v{vL}, 3, 1
    v_lshl_add_u32 v{vT}, v{vT+1}, 6, v{vT}
    v_bfe_u32 v{vT+1}, v{vL}, 4, 1
    v_lshl_add_u32 v{vT}, v{vT+1}, 5, v{vT}
    v_and_b32 v{vT+1}, 3, v{vL}
    v_lshl_add_u32 v{vT}, v{vT+1}, 3, v{vT}
    v_add_u32 v{vTR}, s{sRING}, v{vT}
    v_xor_b32 v{vTR+1}, 64, v{vTR}
    """)
    A(f"""
    s_lshl_b32 s{sT}, s{sRB}, 1
    s_mul_i32 s{sH0}, s{sT}, 112
    s_mul_i32 s{sT2}, s{sW}, 14
    s_add_u32 s{sH0}, s{sH0}, s{sT2}
    s_lshl_b32 s{sH0}, s{sH0}, 10
    s_add_u32 s{sH1}, s{sH0}, {112*1024}
    s_lshl_b32 s{sKW}, s{sT2}, 14
    s_lshl_b32 s{sPQ0}, s{sT}, 5
    s_lshl_b32 s{sT2}, s{sW}, 2
    s_add_u32 s{sPQ0}, s{sPQ0}, s{sT2}
    s_lshl_b32 s{sPQ0}, s{sPQ0}, 11
    s_add_u32 s{sPQ0}, s{sPQ0}, {PQ_OFF}
    s_add_u32 s{sPQ1}, s{sPQ0}, {32*2048}
    s_lshl_b32 s{sKVF}, s{sT2}, 11
    s_add_u32 s{sKVF}, s{sKVF}, {KVF_OFF}
    """)
    A(f"""
    s_lshl_b32 s{sT}, s{sRB}, 6
    v_lshrrev_b32 v{vT}, 3, v0
    v_add_u32 v{vT}, s{sT}, v{vT}
    v_lshlrev_b32 v{vT}, 10, v{vT}
    v_and_b32 v{vT+1}, 7, v0
    v_lshl_add_u32 v{vT}, v{vT+1}, 4, v{vT}
    s_lshl_b32 s{sT}, s{sCB}, 7
    v_add_u32 v7, s{sT}, v{vT}
    s_waitcnt lgkmcnt(0)
    """)
    srd(A, S_X, 4, 2097152)
    srd(A, S_WO, 6, 524288)
    srd(A, S_W2, 28, 1835008)
    srd(A, S_O, 30, 2097152)
    srd(A, S_WS, 32, WS_BYTES)
    vm = Cnt(63); lg = Cnt(15)
    def hload(i):
        for tb in range(2):
            base = sH0 if tb == 0 else sH1
            if i & 3 == 0 and i > 0 and tb == 0:
                A(f"s_add_u32 s{sH0}, s{sH0}, 4096")
                A(f"s_add_u32 s{sH1}, s{sH1}, 4096")
            A(f"buffer_load_dwordx4 {vr(HF+8*i+4*tb,4)}, v{vL16}, s[{S_WS}:{S_WS+3}], s{base} offen offset:{(i&3)*1024}")
            vm.issue(f"h{i}")
    def wdma(i):
        slot = i % 10
        for a in range(2):
            A(f"s_add_u32 m0, s{sRING}, {slot*2048+a*1024}")
            if i < 14:
                A(f"s_add_u32 s{sT}, s{sKW}, {(16*i+8*a)*1024}")
                A(f"buffer_load_dwordx4 v{vW2O}, s[{S_W2}:{S_W2+3}], s{sT} offen lds")
            else:
                A(f"s_lshl_b32 s{sT}, s{sW}, 16")
                A(f"s_add_u32 s{sT}, s{sT}, {(16*(i-14)+4*a)*1024}")
                A(f"buffer_load_dwordx4 v{vWOO}, s[{S_WO}:{S_WO+3}], s{sT} offen lds")
            vm.issue(f"w{i}")
    def pqload(hd):
        b = HF + 16 * hd
        for tb in range(2):
            for s in range(2):
                base = sPQ0 if tb == 0 else sPQ1
                off = hd * 2048 + s * 1024
                if off >= 4096:
                    A(f"s_add_u32 s{sT}, s{base}, 4096")
                    A(f"buffer_load_dwordx4 {vr(b+8*tb+4*s,4)}, v{vL16}, s[{S_WS}:{S_WS+3}], s{sT} offen offset:{off-4096}")
                else:
                    A(f"buffer_load_dwordx4 {vr(b+8*tb+4*s,4)}, v{vL16}, s[{S_WS}:{S_WS+3}], s{base} offen offset:{off}")
                vm.issue(f"p{hd}")
    KV = HF + 64
    def kvload(hd):
        for s in range(2):
            off = hd * 2048 + s * 1024
            if off >= 4096:
                A(f"s_add_u32 s{sT}, s{sKVF}, 4096")
                A(f"buffer_load_dwordx4 {vr(KV+8*hd+4*s,4)}, v{vL16}, s[{S_WS}:{S_WS+3}], s{sT} offen offset:{off-4096}")
            else:
                A(f"buffer_load_dwordx4 {vr(KV+8*hd+4*s,4)}, v{vL16}, s[{S_WS}:{S_WS+3}], s{sKVF} offen offset:{off}")
            vm.issue(f"k{hd}")
    def trreads(i):
        slot = i % 10
        b = WF[i & 1]
        for nt in range(2):
            A(f"ds_read_b64_tr_b16 {vr(b+4*nt,2)}, v{vTR+nt} offset:{slot*2048}")
            A(f"ds_read_b64_tr_b16 {vr(b+4*nt+2,2)}, v{vTR+nt} offset:{slot*2048+1024}")
            lg.issue(f"t{i}"); lg.issue(f"t{i}")
    def wait_vm(tags):
        n = vm.wait_for(tags)
        if n is not None: A(f"s_waitcnt vmcnt({n})")
    def wait_lg(tags):
        n = lg.wait_for(tags)
        if n is not None: A(f"s_waitcnt lgkmcnt({n})")
    for i in range(10):
        hload(i); wdma(i)
    for i in range(10, 14): hload(i)
    A(f"buffer_load_dwordx4 {vr(vXRES,4)}, v7, s[{S_X}:{S_X+3}], 0 offen")
    vm.issue("xres")
    wait_vm(["w0"])
    trreads(0)
    for i in range(18):
        if i + 1 < 18:
            wait_vm([f"w{i+1}"])
            trreads(i + 1)
        wait_lg([f"t{i}"])
        if i + 10 < 18: wdma(i + 10)
        b = WF[i & 1]
        if i < 14:
            wait_vm([f"h{i}"])
            for nt in range(2):
                for tb in range(2):
                    acc = vr(ACC + 32 * nt + 16 * tb, 16)
                    c = "0" if i == 0 else acc
                    A(f"v_mfma_f32_32x32x16_bf16 {acc}, {vr(b+4*nt,4)}, {vr(HF+8*i+4*tb,4)}, {c}")
            if i in (1, 3, 5, 7): pqload(i // 2)
            if i == 11:
                for hd in range(4): kvload(hd)
        else:
            hd = i - 14
            wait_vm([f"p{hd}", f"k{hd}"])
            pb = HF + 16 * hd
            for tb in range(2):
                A(f"v_mfma_f32_32x32x16_bf16 {vr(ND+16*tb,16)}, {vr(KV+8*hd,4)}, {vr(pb+8*tb,4)}, 0")
            for tb in range(2):
                A(f"v_mfma_f32_32x32x16_bf16 {vr(ND+16*tb,16)}, {vr(KV+8*hd+4,4)}, {vr(pb+8*tb+4,4)}, {vr(ND+16*tb,16)}")
            for tb in range(2):
                N = ND + 16 * tb
                A(f"""
                v_add_f32 v{N+8}, s{sEPS}, v{N+8}
                v_rcp_f32 v{N+8}, v{N+8}
                """)
                for p in range(4):
                    A(f"v_pk_mul_f32 {vr(N+2*p,2)}, {vr(N+2*p,2)}, {vr(N+8,2)} op_sel_hi:[1,0]")
                for p in range(4):
                    A(f"v_cvt_pk_bf16_f32 v{OF+4*tb+p}, v{N+2*p}, v{N+2*p+1}")
            for nt in range(2):
                for tb in range(2):
                    acc = vr(ACC + 32 * nt + 16 * tb, 16)
                    A(f"v_mfma_f32_32x32x16_bf16 {acc}, {vr(b+4*nt,4)}, {vr(OF+4*tb,4)}, {acc}")
    A(f"""
    v_and_b32 v{vT}, 31, v{vL}
    v_mul_u32_u24 v{vT}, 272, v{vT}
    v_lshrrev_b32 v{vT+1}, 5, v{vL}
    v_lshl_add_u32 v{vT}, v{vT+1}, 4, v{vT}
    v_add_u32 v{vT}, s{sRING}, v{vT}
    """)
    for nt in range(2):
        for tb in range(2):
            for g in range(4):
                A(f"ds_write_b128 v{vT}, {vr(ACC+32*nt+16*tb+4*g,4)} offset:{tb*32*272+nt*128+g*32}")
    A(f"""
    v_lshrrev_b32 v{vT+1}, 3, v0
    v_mul_u32_u24 v{vT+1}, 272, v{vT+1}
    v_and_b32 v{vT+2}, 7, v0
    v_lshl_add_u32 v{vT+1}, v{vT+2}, 5, v{vT+1}
    v_add_u32 v{vT+2}, {3*20480}, v{vT+1}
    v_add_u32 v{vT+3}, {6*20480}, v{vT+1}
    s_waitcnt lgkmcnt(0)
    s_barrier
    """)
    R = HF
    for w in range(8):
        a = vT + 1 + w // 3
        off = (w % 3) * 20480
        A(f"ds_read_b128 {vr(R+8*w,4)}, v{a} offset:{off}")
        A(f"ds_read_b128 {vr(R+8*w+4,4)}, v{a} offset:{off+16}")
    wait_vm(["xres"])
    X = ND
    for p in range(4):
        A(f"v_lshlrev_b32 v{X+2*p}, 16, v{vXRES+p}")
        A(f"v_and_b32 v{X+2*p+1}, 0xffff0000, v{vXRES+p}")
    for w in range(8):
        A(f"s_waitcnt lgkmcnt({2*(7-w)})")
        for p in range(4):
            A(f"v_pk_add_f32 {vr(X+2*p,2)}, {vr(X+2*p,2)}, {vr(R+8*w+2*p,2)}")
    for p in range(4):
        A(f"v_cvt_pk_bf16_f32 v{OF+p}, v{X+2*p}, v{X+2*p+1}")
    A(f"buffer_store_dwordx4 {vr(OF,4)}, v7, s[{S_O}:{S_O+3}], 0 offen")
    A.label("k2_end")
    A("s_endpgm")
    return 248

def desc(name, nv):
    nv = (nv + 7) // 8 * 8
    return f""".amdhsa_kernel {name}
  .amdhsa_next_free_vgpr {nv}
  .amdhsa_next_free_sgpr 96
  .amdhsa_accum_offset {nv}
  .amdhsa_group_segment_fixed_size 0
  .amdhsa_kernarg_size 80
  .amdhsa_user_sgpr_count 2
  .amdhsa_user_sgpr_kernarg_segment_ptr 1
  .amdhsa_system_sgpr_workgroup_id_x 1
.end_amdhsa_kernel
"""

def main(path):
    kernels = [("k1_kernel", gen_k1, 256, 512, K1_LDS), ("kr_kernel", gen_kr, 256, 64, 0), ("k2_kernel", gen_k2, 256, 512, K2_LDS)]
    out = "; generated by dev/gen.py\n"
    for n, g, gx, bx, lds in kernels:
        out += f"; @launch kernel={n} grid=({gx},1,1) block=({bx},1,1) lds={lds}\n"
    out += '.amdgcn_target "amdgcn-amd-amdhsa--gfx950"\n.text\n'
    descs = ""
    for n, g, gx, bx, lds in kernels:
        A = Asm()
        nv = g(A)
        out += f".globl {n}\n.p2align 8\n.type {n},@function\n" + A.finalize()
        descs += ".p2align 6\n" + desc(n, nv)
    out += '.section .rodata,"a"\n' + descs
    open(path, "w").write(out)

if __name__ == "__main__":
    main(sys.argv[1] if len(sys.argv) > 1 else "parallel_sum__linear_kernel_hedgehog__dense_activation_silu__prompt.s")
    print(k1_vm_counts())
```
